```python
import torch

def _softmax(x, axis=-1):
    return torch.softmax(x, dim=axis)
def _gelu(x):
    return torch.nn.functional.gelu(x, approximate="tanh")
def _silu(x):
    return torch.nn.functional.silu(x)
def _sigmoid(x):
    return torch.sigmoid(x)
def _layernorm(x, axis=-1, eps=1e-5):
    m = x.mean(dim=axis, keepdim=True)
    v = x.var(dim=axis, keepdim=True, unbiased=False)
    return (x - m) / torch.sqrt(v + eps)
def _scatter_add(tgt, idx, src, axis=0):
    return tgt.clone().index_add_(axis, idx, src)
def _segment_sum(src, seg, n):
    out = torch.zeros((n,) + src.shape[1:], dtype=src.dtype)
    return out.index_add_(0, seg, src)
def _pad(x, pw):
    flat = tuple(v for pair in reversed(pw) for v in pair)
    return torch.nn.functional.pad(x, flat)

kernel_name = 'interleave_layers__sliding_block_cached__sliding_block_cached__decode'

def setup_inputs():

    _w = (lambda a: (lambda t: t.to(torch.bfloat16) if t.is_floating_point() else t)(torch.as_tensor(a)))
    def _A_setup():
        B, Sq, D = 2, 1, 512
        Hq, Hkv, Sk, Dh = 32, 32, 8192, 128
        assert Hq % Hkv == 0, (Hq, Hkv)
        return {
            "x": _w((lambda *s: torch.randn(*s, dtype=torch.bfloat16) * 0.1)(B, Sq, D)),
            "k_cache": _w((lambda *s: torch.randn(*s, dtype=torch.bfloat16) * 0.8)(B, Hkv, Sk, Dh)),
            "v_cache": _w((lambda *s: torch.randn(*s, dtype=torch.bfloat16) * 3.2)(B, Hkv, Sk, Dh)),
            "wq": _w((lambda *s: torch.randn(*s, dtype=torch.bfloat16) * 0.8)(D, Hq * Dh) * (D ** -0.5)),
            "wo": _w((lambda *s: torch.randn(*s, dtype=torch.bfloat16) * 3.2)(Hq * Dh, D) * ((Hq * Dh) ** -0.5)),
        }
    _A_in = _A_setup()

    def _B_setup():
        B, Sq, D = 2, 1, 512
        Hq, Hkv, Sk, Dh = 32, 32, 8192, 128
        assert Hq % Hkv == 0, (Hq, Hkv)
        return {
            "x": _w((lambda *s: torch.randn(*s, dtype=torch.bfloat16) * 0.1)(B, Sq, D)),
            "k_cache": _w((lambda *s: torch.randn(*s, dtype=torch.bfloat16) * 1.6)(B, Hkv, Sk, Dh)),
            "v_cache": _w((lambda *s: torch.randn(*s, dtype=torch.bfloat16) * 1.6)(B, Hkv, Sk, Dh)),
            "wq": _w((lambda *s: torch.randn(*s, dtype=torch.bfloat16) * 1.6)(D, Hq * Dh) * (D ** -0.5)),
            "wo": _w((lambda *s: torch.randn(*s, dtype=torch.bfloat16) * 1.6)(Hq * Dh, D) * ((Hq * Dh) ** -0.5)),
        }
    _B_in = _B_setup()

    return {
        "A_x": _A_in["x"],
        "A_k_cache": _A_in["k_cache"],
        "A_v_cache": _A_in["v_cache"],
        "A_wq": _A_in["wq"],
        "A_wo": _A_in["wo"],
        "B_x": _B_in["x"],
        "B_k_cache": _B_in["k_cache"],
        "B_v_cache": _B_in["v_cache"],
        "B_wq": _B_in["wq"],
        "B_wo": _B_in["wo"],
    }

def reference(A_x, A_k_cache, A_v_cache, A_wq, A_wo, B_x, B_k_cache, B_v_cache, B_wq, B_wo):
    def _A_ref(x, k_cache, v_cache, wq, wo):
        B, Sq, D = x.shape
        Hq, Dh = 32, 128
        Hkv, Sk = k_cache.shape[1], k_cache.shape[2]
        W = min(4096, max(256, Sk // 4))
        rep = Hq // Hkv
        q = (lambda x, *d: x.permute(*d))((x @ wq).reshape(B, Sq, Hq, Dh), 0, 2, 1, 3)
        k = (lambda x, n, axis: torch.repeat_interleave(x, n, dim=axis))(k_cache[:, :, Sk - W:, :], rep, axis=1)
        v = (lambda x, n, axis: torch.repeat_interleave(x, n, dim=axis))(v_cache[:, :, Sk - W:, :], rep, axis=1)
        scores = torch.einsum("bhqd,bhkd->bhqk", q, k) * (Dh ** -0.5)
        p = _softmax(scores, axis=-1)
        o = torch.einsum("bhqk,bhkd->bhqd", p, v)
        return (lambda x, *d: x.permute(*d))(o, 0, 2, 1, 3).reshape(B, Sq, Hq * Dh) @ wo

    def _B_ref(x, k_cache, v_cache, wq, wo):
        B, Sq, D = x.shape
        Hq, Dh = 32, 128
        Hkv, Sk = k_cache.shape[1], k_cache.shape[2]
        W = min(4096, max(256, Sk // 4))
        rep = Hq // Hkv
        q = (lambda x, *d: x.permute(*d))((x @ wq).reshape(B, Sq, Hq, Dh), 0, 2, 1, 3)
        k = (lambda x, n, axis: torch.repeat_interleave(x, n, dim=axis))(k_cache[:, :, Sk - W:, :], rep, axis=1)
        v = (lambda x, n, axis: torch.repeat_interleave(x, n, dim=axis))(v_cache[:, :, Sk - W:, :], rep, axis=1)
        scores = torch.einsum("bhqd,bhkd->bhqk", q, k) * (Dh ** -0.5)
        p = _softmax(scores, axis=-1)
        o = torch.einsum("bhqk,bhkd->bhqd", p, v)
        return (lambda x, *d: x.permute(*d))(o, 0, 2, 1, 3).reshape(B, Sq, Hq * Dh) @ wo

    x = A_x
    x = x + _A_ref(_layernorm(x, axis=-1), A_k_cache, A_v_cache, A_wq, A_wo)
    x = x + _B_ref(_layernorm(x, axis=-1), B_k_cache, B_v_cache, B_wq, B_wo)
    x = x + _A_ref(_layernorm(x, axis=-1), A_k_cache, A_v_cache, A_wq, A_wo)
    x = x + _B_ref(_layernorm(x, axis=-1), B_k_cache, B_v_cache, B_wq, B_wo)
    return x
```

```python
class A:
    def __init__(self): self.l = []; self.n = 0
    def __call__(self, s=""):
        for x in s.split("\n"):
            x = x.strip()
            if x: self.l.append(("" if x.endswith(":") else "    ") + x)
    def c(self, s): self.l.append("    ; " + s)
    def label(self, p="L"):
        self.n += 1; return f"{p}_{self.n}"
    def text(self): return "\n".join(self.l) + "\n"

KN = "interleave_layers__sliding_block_cached__sliding_block_cached__decode_kernel"
HEAD = """; Kernarg layout for this problem (104 bytes, ptrs only, base s[0:1]):
"""
def wrap(body, grid=256, block=256, lds=163840, vgpr=512, accum=256, sgpr=96, extra_head=""):
    return (HEAD + extra_head + f"; @launch grid=({grid},1,1) block=({block},1,1) lds={lds}\n"
      + '.amdgcn_target "amdgcn-amd-amdhsa--gfx950"\n.text\n'
      + f".globl {KN}\n.p2align 8\n.type {KN},@function\n{KN}:\n" + body
      + f"""s_endpgm
.section .rodata,"a"
.p2align 6
.amdhsa_kernel {KN}
  .amdhsa_next_free_vgpr {vgpr}
  .amdhsa_next_free_sgpr {sgpr}
  .amdhsa_accum_offset {accum}
  .amdhsa_group_segment_fixed_size 0
  .amdhsa_kernarg_size 104
  .amdhsa_user_sgpr_count 2
  .amdhsa_user_sgpr_kernarg_segment_ptr 1
  .amdhsa_system_sgpr_workgroup_id_x 1
  .amdhsa_float_denorm_mode_32 3
  .amdhsa_float_denorm_mode_16_64 3
.end_amdhsa_kernel
""")
```

```python
import re
REG = re.compile(r'\b([vas])\[(\d+):(\d+)\]|\b([vas])(\d+)\b|\b(vcc|exec|m0|scc)\b')
def regs_of(tok):
    out = []
    for m in REG.finditer(tok):
        if m.group(1):
            out += [(m.group(1), i) for i in range(int(m.group(2)), int(m.group(3)) + 1)]
        elif m.group(4):
            out.append((m.group(4), int(m.group(5))))
        else:
            n = m.group(6)
            if n == 'vcc': out += [('vcc', 0)]
            elif n == 'exec': out += [('exec', 0)]
            elif n == 'm0': out += [('m0', 0)]
    return out
TRANS = ('v_exp_f32', 'v_log_f32', 'v_rcp_f32', 'v_rsq_f32', 'v_sqrt_f32', 'v_sin_f32', 'v_cos_f32', 'v_rcp_iflag_f32')
def split_ops(s):
    out = []; d = 0; cur = ''
    for ch in s:
        if ch == '[': d += 1
        if ch == ']': d -= 1
        if ch == ',' and d == 0: out.append(cur.strip()); cur = ''
        else: cur += ch
    if cur.strip(): out.append(cur.strip())
    return out
class I:
    pass
def parse(line):
    s = line.split(';')[0].strip()
    i = I(); i.text = line; i.label = None; i.mn = None
    if not s or s.startswith('.'):
        i.kind = 'none'; return i
    if s.endswith(':'):
        i.kind = 'label'; i.label = s[:-1]; return i
    p = s.split(None, 1); mn = p[0]; rest = p[1] if len(p) > 1 else ''
    i.mn = mn
    ops = split_ops(rest)
    clean = []
    for o in ops:
        o2 = re.sub(r'\b(quad_perm|op_sel|op_sel_hi|neg_lo|neg_hi|cbsz|abid|blgp|offset|offset0|offset1|row_shr|row_shl|row_ror|row_bcast|row_mask|bank_mask|bitop3|bound_ctrl|row_newbcast|row_share|hwreg)\s*[:(]\s*(\[[^\]]*\]|\S+)', '', o)
        clean.append(o2)
    i.ops = clean
    i.dpp = ('quad_perm' in rest or 'row_' in rest or mn.endswith('_dpp'))
    i.w = []; i.r = []; i.states = 1; i.target = None
    R = [regs_of(o) for o in clean]
    allr = lambda a: [x for l in a for x in l]
    if mn == 's_nop':
        i.kind = 'nop'; i.states = int(rest.strip(), 0) + 1
    elif mn.startswith('v_mfma') or mn.startswith('v_smfmac'):
        i.kind = 'mfma'; i.w = R[0]; i.a = R[1]; i.b = R[2]; i.c = R[3] if len(R) > 3 else []
        if mn.startswith('v_smfmac'):
            i.idx = i.c; i.c = R[0]; i.r = i.a + i.b + i.c + i.idx
        else:
            i.r = i.a + i.b + i.c
        i.passes = 8 if '32x32' in mn else 4
        if '4x4x4' in mn: i.passes = 2
        if '16x16x4_f32' in mn or '16x16x4f32' in mn: i.passes = 8
    elif mn.startswith('v_'):
        i.kind = 'valu'
        if mn.startswith('v_cmp'):
            i.w = R[0]; i.r = allr(R[1:])
            if mn.startswith('v_cmpx'): i.w = i.w + [('exec', 0)]
        elif mn.startswith('v_readfirstlane') or mn.startswith('v_readlane'):
            i.w = R[0]; i.r = allr(R[1:]); i.rl = True
        elif 'permlane' in mn and 'swap' in mn:
            i.w = R[0] + R[1]; i.r = R[0] + R[1]; i.perm = True
        elif mn.startswith('v_add_co') or mn.startswith('v_addc_co') or mn.startswith('v_sub_co') or mn.startswith('v_mad_u64'):
            i.w = R[0] + R[1]; i.r = allr(R[2:])
        else:
            i.w = R[0]; i.r = allr(R[1:])
            if mn.startswith('v_fmac') or mn.startswith('v_dot2c') or mn.startswith('v_writelane') or i.dpp: i.r = i.r + R[0]
            if mn.startswith('v_cndmask') and len(R) == 3: i.r = i.r + [('vcc', 0)]
        i.trans = any(mn.startswith(t) for t in TRANS)
    elif mn.startswith('ds_'):
        i.kind = 'ds'
        if mn.startswith('ds_read') or mn.startswith('ds_bpermute') or mn.startswith('ds_swizzle') or mn.startswith('ds_permute'):
            i.w = R[0]; i.r = allr(R[1:])
        else:
            i.r = allr(R)
    elif mn.startswith('global_') or mn.startswith('buffer_') or mn.startswith('flat_'):
        i.kind = 'vmem'
        i.lds = ('_lds_' in mn) or bool(re.search(r'\blds\b', rest))
        if 'load' in mn and not i.lds:
            i.w = R[0]; i.r = allr(R[1:])
        elif 'atomic' in mn and 'sc0' in rest:
            i.w = R[0]; i.r = allr(R[1:])
        else:
            i.r = allr(R)
            if 'store' in mn and ('x4' in mn or 'x3' in mn):
                i.widedata = R[1] if mn.startswith('global_') else R[0]
        if i.lds: i.r = i.r + [('m0', 0)]
    elif mn.startswith('s_'):
        i.kind = 'salu'
        if mn in ('s_branch',) or mn.startswith('s_cbranch'):
            i.target = rest.strip(); i.kind = 'branch'
        elif mn.startswith('s_cmp') or mn.startswith('s_bitcmp') or mn in ('s_waitcnt', 's_barrier', 's_sleep', 's_setprio', 's_endpgm'):
            i.r = allr(R)
        else:
            i.w = R[0] if R else []; i.r = allr(R[1:])
            if 'saveexec' in mn: i.w = i.w + [('exec', 0)]
    else:
        raise ValueError("unknown instr: " + line)
    return i

def fix(lines, verbose=False):
    ins = [parse(l) for l in lines]
    snaps = {}
    total_added = 0
    for it in range(6):
        out = []; added = 0
        now = 0
        st = dict(vw={}, tw={}, mw={}, mc={}, sd={}, sw={}, m0=-99)
        newsnaps = {}
        def age(st, now):
            return {k: ({r: ((now - t[0],) + t[1:] if isinstance(t, tuple) else now - t) for r, t in v.items()} if isinstance(v, dict) else now - v) for k, v in st.items()}
        def merge(st, now, ag):
            for k, v in ag.items():
                if isinstance(v, dict):
                    for r, t in v.items():
                        if isinstance(t, tuple):
                            nt = (now - t[0],) + t[1:]
                            if r not in st[k] or st[k][r][0] < nt[0]: st[k][r] = nt
                        else:
                            nt = now - t
                            if r not in st[k] or st[k][r] < nt: st[k][r] = nt
                else:
                    st[k] = max(st[k], now - v)
        dead = False
        for i in ins:
            if i.kind == 'none':
                out.append(i); continue
            if i.kind == 'label':
                if dead:
                    st = dict(vw={}, tw={}, mw={}, mc={}, sd={}, sw={}, m0=-99); dead = False
                for ag in snaps.get(i.label, []): merge(st, now, ag)
                out.append(i); continue
            need = 0
            def req(t, states):
                nonlocal need
                have = now - t - 1
                if states - have > need: need = states - have
            if i.kind in ('valu', 'mfma', 'ds', 'vmem'):
                isv = i.kind == 'valu'
                for r in i.r:
                    if i.kind == 'mfma' and r in st['vw'] and r[0] in 'va': req(st['vw'][r], 2)
                    if isv and i.dpp and r in st['vw'] and r[0] == 'v': req(st['vw'][r], 2)
                    if isv and getattr(i, 'perm', False) and r in st['vw']: req(st['vw'][r], 2)
                    if isv and getattr(i, 'rl', False) and r in st['vw'] and r[0] == 'v': req(st['vw'][r], 1)
                    if isv and r in st['tw'] and not i.trans: req(st['tw'][r], 1)
                    if isv and getattr(i,'trans',False) and r in st['tw']: req(st['tw'][r], 1)
                    if isv and r in st['sw']:
                        req(st['sw'][r], 4 if getattr(i, 'rl', False) else 2)
                    if i.kind == 'vmem' and r in st['sw']: req(st['sw'][r], 5)
                    if i.kind == 'mfma' and r == ('exec', 0) and r in st['sw']: req(st['sw'][r], 4)
                    if r in st['mw']:
                        t, passes, D = st['mw'][r]
                        if i.kind == 'mfma':
                            if r in i.a or r in i.b or r in getattr(i, 'idx', []): req(t, {2: 5, 4: 8, 8: 12, 16: 20}[passes])
                            elif r in i.c:
                                if tuple(i.c) == D and passes == i.passes and passes >= 4: pass
                                elif tuple(i.c) == D and passes == i.passes: req(t, 2)
                                else: req(t, {2: 4, 4: 6, 8: 10, 16: 18}[passes])
                        else:
                            req(t, {2: 5, 4: 8, 8: 12, 16: 20}[passes])
                for r in i.w:
                    if r in st['mw'] and i.kind != 'mfma':
                        t, passes, D = st['mw'][r]; req(t, {2: 5, 4: 8, 8: 12, 16: 20}[passes])
                    if r in st['mw'] and i.kind == 'mfma':
                        t, passes, D = st['mw'][r]
                        if not (tuple(i.w) == D and passes == i.passes): req(t, {2: 4, 4: 6, 8: 10, 16: 18}[passes])
                    if isv and r in st['mc']:
                        t, passes = st['mc'][r]; req(t, {2: 1, 4: 3, 8: 7, 16: 15}[passes])
                    if r in st['sd'] and i.kind in ('valu',): req(st['sd'][r], 2)
                    if r in st['sd'] and i.kind in ('ds', 'vmem', 'mfma'): req(st['sd'][r], 1)
                if i.kind == 'vmem' and i.lds: req(st['m0'], 1)
                if isv and i.dpp and ('exec', 0) in st['sw']: req(st['sw'][('exec', 0)], 5)
            if i.kind in ('salu', 'branch'):
                for r in getattr(i, 'r', []):
                    if r in st['sw']: req(st['sw'][r], 1)
                if i.kind == 'branch' and ('vcc' in i.mn) and ('vcc', 0) in st['sw']: req(st['sw'][('vcc', 0)], 5)
                if i.kind == 'branch' and ('exec' in i.mn) and ('exec', 0) in st['sw']: req(st['sw'][('exec', 0)], 5)
            if need > 0:
                n = I(); n.kind = 'nop'; n.states = need; n.text = f"    s_nop {need-1}   ; hz"; n.w = []; n.r = []; n.mn = 's_nop'
                while need > 16:
                    m = I(); m.kind = 'nop'; m.states = 16; m.text = "    s_nop 15   ; hz"; m.w = []; m.r = []; m.mn = 's_nop'
                    out.append(m); now += 16; need -= 16; n.states = need; n.text = f"    s_nop {need-1}   ; hz"
                out.append(n); now += n.states; added += 1
            out.append(i)
            t = now
            if i.kind == 'valu':
                for r in i.w:
                    if r[0] in 'va':
                        st['vw'][r] = t
                        st['mw'].pop(r, None)
                        if i.trans: st['tw'][r] = t
                        else: st['tw'].pop(r, None)
                    else: st['sw'][r] = t
            elif i.kind == 'mfma':
                D = tuple(i.w)
                for r in i.w:
                    st['mw'][r] = (t, i.passes, D); st['vw'].pop(r, None); st['tw'].pop(r, None)
                for r in i.c: st['mc'][r] = (t, i.passes)
            elif i.kind in ('ds', 'vmem'):
                for r in i.w:
                    st['vw'].pop(r, None); st['mw'].pop(r, None); st['tw'].pop(r, None)
                for r in getattr(i, 'widedata', []): st['sd'][r] = t
            elif i.kind == 'salu':
                for r in i.w:
                    if r == ('m0', 0): st['m0'] = t
                    st['sw'].pop(r, None)
            now += i.states
            if i.kind == 'branch':
                newsnaps.setdefault(i.target, []).append(age(st, now))
                if i.mn == 's_branch': dead = True
            if i.mn == 's_endpgm': dead = True
            if len(st['vw']) > 600:
                for k in ('vw', 'tw', 'sw', 'sd'):
                    st[k] = {r: v for r, v in st[k].items() if now - v < 24}
                st['mw'] = {r: v for r, v in st['mw'].items() if now - v[0] < 24}
                st['mc'] = {r: v for r, v in st['mc'].items() if now - v[0] < 24}
        snaps = newsnaps
        ins = out
        total_added += added
        if added == 0 and it > 0: break
    if verbose: print("hazard nops inserted:", total_added)
    return [i.text for i in ins]
```

```python
import sys, math
from asmlib import A, wrap
import hazard

VREG = 0
WBUF = 131072
MISC = 147456
PB = MISC
ML = MISC + 2048
SH = MISC + 3072
YP = MISC + 7168
WS_XID = 0x1000
WS_C = 0x10000
WS_B2 = 0x40000
WS_B1 = 0x60000
WS_A = 0x100000
WS_STAMP = 0x200000
def offC(i): return WS_C + i * 0x8000
def offB2(L): return WS_B2 + L * 0x8000
def offB1(L): return WS_B1 + L * 0x8000
def offA(L): return WS_A + L * 0x40000
sW, sX, sJ, sHL, sB, sC_ = 3, 4, 5, 6, 7, 8
sWS = 10
sT = 12
sFLAG = 13
sOUT = 14
sKA, sVA, sKB, sVB = 16, 18, 20, 22
sWQA, sWOA, sWQB, sWOB = 24, 26, 28, 30
sXP = 32
sSC = 34
sM8 = 35
sM16 = 36
sPERM = 37
sCNT = 38
sVBT = 39
sVBM = 40
sT0, sT1, sT2, sT3 = 41, 42, 43, 44
sSTAMP = 58
vL, vT, vTR, vXO, vSHR, vSHQ, vK, vVE, vVO = 0, 1, 2, 3, 4, 5, 6, 7, 8
vA, vB_, vC, vD, vE, vF, vG = 9, 10, 11, 12, 13, 14, 15
Q = 16
S = 32
O2 = 64
R1, R2, R3 = 80, 96, 112
KB = 128
def Dt(t): return Q + 4 * t if t < 4 else O2 + 4 * (t - 4)
def vr(b, n=4): return f"v[{b}:{b+n-1}]"
def ar(b, n=4): return f"a[{b}:{b+n-1}]"
def sp(b): return f"s[{b}:{b+1}]"
BOUND = 1 << 16

class G:
    def __init__(s, D=12, NDYN=6, stamps=False, nt=True, force_global=False, b1delay=0, upto=99):
        s.a = A(); s.D = D; s.NDYN = NDYN; s.stamps = stamps; s.nstamp = 0; s.stampnames = []
        s.NT = " nt" if nt else ""
        s.vm_n = 0; s.vm_done = -1
        s.force_global = force_global; s.b1delay = b1delay; s.upto = upto
    def vm(s, t):
        s.a(t); i = s.vm_n; s.vm_n += 1; return i
    def vmwait(s, i):
        if i <= s.vm_done: return
        n = s.vm_n - i - 1
        s.a(f"s_waitcnt vmcnt({min(n, 63)})")
        s.vm_done = i if n <= 63 else s.vm_n - 64
    def vmall(s):
        s.a("s_waitcnt vmcnt(0)"); s.vm_done = s.vm_n - 1
    def vmreset(s): s.vm_done = s.vm_n - 1
    def throttle(s):
        k = s.vm_n - s.D
        if k > s.vm_done: s.vmwait(k)
    def stamp(s, name):
        if not s.stamps: return
        if s.nstamp >= 20: return
        r = sSTAMP + 2 * s.nstamp
        s.a(f"s_memrealtime s[{r}:{r+1}]"); s.nstamp += 1; s.stampnames.append(name)
    def lgk0(s): s.a("s_waitcnt lgkmcnt(0)")
    def barrier(s): s.a("s_waitcnt lgkmcnt(0)\ns_barrier")
    def execm(s, m):
        if m == -1: s.a("s_mov_b64 exec, -1")
        elif m <= 64: s.a(f"s_mov_b64 exec, {m}")
        elif m < (1 << 32): s.a(f"s_mov_b32 exec_lo, 0x{m:x}\ns_mov_b32 exec_hi, 0")
        else: s.a(f"s_mov_b32 exec_lo, 0x{m & 0xffffffff:x}\ns_mov_b32 exec_hi, 0x{m >> 32:x}")
    def wave0(s):
        l = s.a.label("Lw0"); s.a(f"s_cmp_lg_u32 s{sW}, 0\ns_cbranch_scc1 {l}"); return l
    def endw0(s, l): s.a(f"{l}:")

    def k_tile(s, T, ptr, reg):
        a = s.a; ids = []
        if T % 2 == 0 and T > 0: a(f"s_add_u32 s{ptr}, s{ptr}, 8192\ns_addc_u32 s{ptr+1}, s{ptr+1}, 0")
        for st in range(4):
            s.throttle()
            off = -4096 + (T % 2) * 4096 + st * 64
            ids.append(s.vm(f"global_load_dwordx4 {reg(16*T + 4*st)}, v{vK}, {sp(ptr)} offset:{off}{s.NT}"))
        return ids[-1]
    def v_tile(s, T, ptr, throttle=True):
        a = s.a
        a(f"s_lshl_b32 s{sT0}, s{sW}, 15\ns_add_u32 s{sT0}, s{sT0}, {VREG + T*4096}\ns_mov_b32 m0, s{sT0}")
        for ii in range(4):
            if throttle: s.throttle()
            i = s.vm(f"global_load_lds_dwordx4 v{vVE if ii % 2 == 0 else vVO}, {sp(ptr)} offset:{ii*1024}{s.NT}")
        a(f"s_add_u32 s{ptr}, s{ptr}, 4096\ns_addc_u32 s{ptr+1}, s{ptr+1}, 0")
        return i
    def w_dma(s, ptr, rowstride):
        a = s.a
        a(f"v_lshrrev_b32 v{vA}, 1, v{vL}\nv_mul_u32_u24 v{vA}, {rowstride}, v{vA}\nv_and_b32 v{vB_}, 1, v{vL}\nv_lshl_add_u32 v{vA}, v{vB_}, 4, v{vA}")
        a(f"s_lshl_b32 s{sT0}, s{sW}, 12\ns_add_u32 s{sT0}, s{sT0}, {WBUF}")
        for ii in range(4):
            a(f"s_mov_b32 m0, s{sT0}")
            s.throttle()
            i = s.vm(f"global_load_lds_dwordx4 v{vA}, {sp(ptr)}{s.NT}")
            if ii < 3:
                a(f"s_add_u32 s{ptr}, s{ptr}, {32*rowstride}\ns_addc_u32 s{ptr+1}, s{ptr+1}, 0\ns_add_u32 s{sT0}, s{sT0}, 1024")
        return i
    def w_tr(s, dst):
        a = s.a
        a(f"""v_lshrrev_b32 v{vA}, 4, v{vL}
        v_lshlrev_b32 v{vA}, 3, v{vA}
        v_bfe_u32 v{vB_}, v{vL}, 2, 2
        v_add_u32 v{vA}, v{vA}, v{vB_}
        v_lshlrev_b32 v{vA}, 5, v{vA}
        v_and_b32 v{vB_}, 3, v{vL}
        v_lshl_add_u32 v{vA}, v{vB_}, 3, v{vA}
        s_lshl_b32 s{sT0}, s{sW}, 12
        s_add_u32 s{sT0}, s{sT0}, {WBUF}
        v_add_u32 v{vA}, s{sT0}, v{vA}""")
        for st in range(4):
            a(f"ds_read_b64_tr_b16 {vr(dst+4*st, 2)}, v{vA} offset:{st*1024}")
            a(f"ds_read_b64_tr_b16 {vr(dst+4*st+2, 2)}, v{vA} offset:{st*1024+128}")
    def v_move_addr(s, base):
        for t in range(8):
            if t == 0: s.a(f"v_mov_b32 v{base[0]}, v{vTR}")
            else: s.a(f"v_xor_b32 v{base[t]}, {32*t}, v{vTR}")
    def v_move_tile(s, T, addr):
        for t in range(8):
            s.a(f"ds_read_b64_tr_b16 {ar(128 + 16*t + 2*T, 2)}, v{addr[t]} offset:{4096*T}")

    def piggy(s):
        a = s.a; l = a.label("Lpg")
        a(f"s_cmp_ge_u32 s{sVBT}, {s.NDYN}\ns_cbranch_scc1 {l}\ns_mov_b32 m0, s{sVBM}")
        for ii in range(4):
            a(f"global_load_lds_dwordx4 v{vVE if ii % 2 == 0 else vVO}, {sp(sVB)} offset:{ii*1024}{s.NT}")
        a(f"s_add_u32 s{sVB}, s{sVB}, 4096\ns_addc_u32 s{sVB+1}, s{sVB+1}, 0\ns_add_u32 s{sVBM}, s{sVBM}, 4096\ns_add_u32 s{sVBT}, s{sVBT}, 1\n{l}:")
    def poll(s, loads, check, piggy=False, delay=0, common=True):
        a = s.a; lp = a.label("Lpoll"); ld = a.label("Lpdone")
        a(f"s_mov_b32 s{sCNT}, 0")
        if delay: a(f"s_sleep {delay}")
        a(f"{lp}:")
        if piggy: s.piggy()
        loads()
        a("s_waitcnt vmcnt(0)")
        check()
        a(f"s_cmp_eq_u64 vcc, exec\ns_cbranch_scc1 {ld}\ns_add_u32 s{sCNT}, s{sCNT}, 1\ns_cmp_lt_u32 s{sCNT}, {BOUND}\ns_cbranch_scc1 {lp}\n{ld}:")
        if common: s.vmreset()
    def check_tags(s, regs, mask, acc=vG):
        a = s.a
        a(f"v_xor_b32 v{acc}, v{regs[0]}, v{vT}")
        for r in regs[1:]: a(f"v_bitop3_b32 v{acc}, v{r}, v{acc}, v{vT} bitop3:0xDE")
        a(f"v_and_b32 v{acc}, 0x{mask:x}, v{acc}")
    def pub(s, stores):
        a = s.a; l1 = a.label("Lpg"); l2 = a.label("Lpe")
        a(f"s_cmp_eq_u32 s{sFLAG}, 0\ns_cbranch_scc1 {l1}")
        stores("")
        a(f"s_branch {l2}\n{l1}:")
        stores(" sc1")
        a(f"{l2}:")

    def proj(s, W, stats):
        a = s.a
        for st in range(4): a(f"ds_read_b128 {vr(Q+4*st)}, v{vSHR} offset:{64*st}")
        a(f"v_and_b32 v{vA}, 15, v{vL}\nv_lshlrev_b32 v{vA}, 4, v{vA}\ns_lshl_b32 s{sT0}, s{sW}, 2\ns_add_u32 s{sT0}, s{sT0}, {YP}\nv_add_u32 v{vA}, s{sT0}, v{vA}")
        s.lgk0()
        for st in range(4):
            a(f"v_mfma_f32_16x16x32_bf16 {vr(O2)}, {vr(Q+4*st)}, {vr(W+4*st)}, {'0' if st == 0 else vr(O2)}")
        if stats:
            for st in range(4):
                a(f"v_mfma_f32_16x16x32_bf16 {vr(O2+4)}, {vr(Q+4*st)}, {vr(Q+4*st)}, {'0' if st == 0 else vr(O2+4)}")
        s.execm(0xFFFF)
        a(f"ds_write_b32 v{vA}, v{O2} offset:0\nds_write_b32 v{vA}, v{O2+1} offset:256")
        if stats:
            a(f"ds_write_b32 v{vA}, v{O2+2} offset:512\nds_write_b32 v{vA}, v{O2+4} offset:768\nds_write_b32 v{vA}, v{O2+5} offset:1024")
        s.execm(-1)
    def q_finalize(s, inst, force_sc1=False):
        a = s.a
        a(f"""v_and_b32 v{vA}, 31, v{vL}
        v_lshlrev_b32 v{vB_}, 4, v{vA}
        v_add_u32 v{vB_}, {YP}, v{vB_}          ; YP + b'*256 + n*16
        v_and_b32 v{vC}, 15, v{vL}
        v_lshlrev_b32 v{vC}, 4, v{vC}
        v_add_u32 v{vC}, {YP + 512}, v{vC}
        v_bfe_u32 v{vD}, v{vL}, 4, 1            ; b'
        v_mul_u32_u24 v{vE}, 272, v{vD}
        v_add_u32 v{vE}, {YP + 768}, v{vE}      ; S2: row(3+b'), n=b'
        v_lshlrev_b32 v{vD}, 8, v{vD}
        v_add_u32 v{vD}, {YP + 768 + 32}, v{vD} ; S1: row(3+b'), n=2
        ds_read_b128 {vr(S)}, v{vB_}
        ds_read_b128 {vr(S+4)}, v{vC}
        ds_read_b128 {vr(S+8)}, v{vD}
        ds_read_b128 {vr(S+12)}, v{vE}
        v_lshlrev_b32 v{vA}, 2, v{vA}
        s_lshl_b32 s{sT0}, s{sX}, 12
        s_lshl_b32 s{sT1}, s{sJ}, 7
        s_add_u32 s{sT0}, s{sT0}, s{sT1}
        s_add_u32 s{sT0}, s{sT0}, {offC(inst)}
        v_add_u32 v{vA}, s{sT0}, v{vA}
        s_waitcnt lgkmcnt(0)""")
        for k in range(4):
            b = S + 4 * k
            a(f"v_add_f32 v{b}, v{b}, v{b+1}\nv_add_f32 v{b+2}, v{b+2}, v{b+3}")
        for k in range(4):
            b = S + 4 * k
            a(f"v_add_f32 v{b}, v{b}, v{b+2}")
        a(f"""v_mul_f32 v{S+8}, 0x3b000000, v{S+8}      ; mean = S1/512
        v_mul_f32 v{S+12}, 0x3b000000, v{S+12}     ; E[x^2]
        v_fma_f32 v{S+12}, -v{S+8}, v{S+8}, v{S+12}
        v_max_f32 v{S+12}, 0, v{S+12}
        v_add_f32 v{S+12}, 0x3727c5ac, v{S+12}     ; + 1e-5
        v_rsq_f32 v{S+12}, v{S+12}
        v_fma_f32 v{S}, -v{S+8}, v{S+4}, v{S}
        v_mul_f32 v{S}, v{S}, v{S+12}
        v_cvt_pk_bf16_f32 v{S}, v{S}, v{S}
        v_bfi_b32 v{S}, s{sM16}, v{S}, v{vT}""")
        s.execm(0xFFFFFFFF)
        if force_sc1: a(f"global_store_dword v{vA}, v{S}, {sp(sWS)} sc1")
        else: s.pub(lambda f: a(f"global_store_dword v{vA}, v{S}, {sp(sWS)}{f}"))
        s.execm(-1)
    def c_addr(s, inst):
        a = s.a
        a(f"""v_bfe_u32 v{vA}, v{vL}, 2, 3
        v_lshlrev_b32 v{vA}, 7, v{vA}
        v_and_b32 v{vB_}, 3, v{vL}
        v_lshl_add_u32 v{vA}, v{vB_}, 4, v{vA}
        s_lshl_b32 s{sT0}, s{sX}, 12
        s_lshl_b32 s{sT1}, s{sHL}, 10
        s_add_u32 s{sT0}, s{sT0}, s{sT1}
        s_lshl_b32 s{sT1}, s{sB}, 6
        s_add_u32 s{sT0}, s{sT0}, s{sT1}
        s_add_u32 s{sT0}, s{sT0}, {offC(inst)}
        v_add_u32 v{vA}, s{sT0}, v{vA}""")
    def c_load(s): s.a(f"global_load_dwordx4 {vr(S)}, v{vA}, {sp(sWS)} sc1")
    def c_check(s):
        s.check_tags([S, S+1, S+2, S+3], 0xffff); s.a(f"v_cmp_eq_u32 vcc, 0, v{vG}")
    def c_finish(s):
        a = s.a
        a(f"""v_perm_b32 v{S}, v{S+1}, v{S}, s{sPERM}
        v_perm_b32 v{S+1}, v{S+3}, v{S+2}, s{sPERM}
        v_and_b32 v{vA}, 31, v{vL}
        v_lshlrev_b32 v{vA}, 3, v{vA}
        s_lshl_b32 s{sT0}, s{sW}, 10
        s_add_u32 s{sT0}, s{sT0}, {SH}
        v_add_u32 v{vA}, s{sT0}, v{vA}
        ds_write_b64 v{vA}, {vr(S,2)}
        s_waitcnt lgkmcnt(0)""")
        for st in range(4): a(f"ds_read_b128 {vr(Q+4*st)}, v{vSHQ} offset:{64*st}")
        s.lgk0()
    def qk(s, kreg):
        for T in range(8):
            for st in range(4):
                s.a(f"v_mfma_f32_16x16x32_bf16 {vr(S+4*T)}, {kreg(16*T+4*st)}, {vr(Q+4*st)}, {'0' if st == 0 else vr(S+4*T)}")
    def softmax(s):
        a = s.a
        m = [vA, vB_, vC, vD]
        for k in range(4):
            b = S + 8 * k
            a(f"v_max3_f32 v{m[k]}, v{b}, v{b+1}, v{b+2}")
        for k in range(4):
            b = S + 8 * k
            a(f"v_max3_f32 v{m[k]}, v{m[k]}, v{b+3}, v{b+4}")
        for k in range(4):
            b = S + 8 * k
            a(f"v_max3_f32 v{m[k]}, v{m[k]}, v{b+5}, v{b+6}")
        for k in range(4):
            b = S + 8 * k
            a(f"v_max_f32 v{m[k]}, v{m[k]}, v{b+7}")
        a(f"""v_max3_f32 v{vA}, v{vA}, v{vB_}, v{vC}
        v_max_f32 v{vA}, v{vA}, v{vD}
        v_mov_b32 v{vB_}, v{vA}
        v_permlane16_swap_b32 v{vA}, v{vB_}
        v_max_f32 v{vA}, v{vA}, v{vB_}
        v_mov_b32 v{vB_}, v{vA}
        v_permlane32_swap_b32 v{vA}, v{vB_}
        v_max_f32 v{vA}, v{vA}, v{vB_}
        v_mul_f32 v{vD}, s{sSC}, v{vA}""")
        for r in range(32): a(f"v_fma_f32 v{S+r}, v{S+r}, s{sSC}, -v{vD}")
        for r in range(32): a(f"v_exp_f32 v{S+r}, v{S+r}")
        lsum = [vE, vF, vG, vA]
        for k in range(4): a(f"v_add_f32 v{lsum[k]}, v{S+8*k}, v{S+8*k+1}")
        for e in range(2, 8):
            for k in range(4): a(f"v_add_f32 v{lsum[k]}, v{lsum[k]}, v{S+8*k+e}")
        for u in range(4):
            b = S + 8 * u
            a(f"v_cvt_pk_bf16_f32 v{b}, v{b}, v{b+1}\nv_cvt_pk_bf16_f32 v{b+1}, v{b+2}, v{b+3}\nv_cvt_pk_bf16_f32 v{b+2}, v{b+4}, v{b+5}\nv_cvt_pk_bf16_f32 v{b+3}, v{b+6}, v{b+7}")
        a(f"""v_add_f32 v{vE}, v{vE}, v{vF}
        v_add_f32 v{vG}, v{vG}, v{vA}
        v_add_f32 v{vE}, v{vE}, v{vG}
        v_mov_b32 v{vB_}, v{vE}
        v_permlane16_swap_b32 v{vE}, v{vB_}
        v_add_f32 v{vE}, v{vE}, v{vB_}
        v_mov_b32 v{vB_}, v{vE}
        v_permlane32_swap_b32 v{vE}, v{vB_}
        v_add_f32 v{vE}, v{vE}, v{vB_}""")
    def pv_regs(s):
        for u in range(4):
            for t in range(8):
                s.a(f"v_mfma_f32_16x16x32_bf16 {vr(Dt(t))}, {vr(S+8*u)}, {ar(128+16*t+4*u)}, {'0' if u == 0 else vr(Dt(t))}")
    def pv_lds(s, waitfn):
        a = s.a
        stg = [S + 8 * k + 4 for k in range(4)]
        adr = [vA, vB_, vC, vF]
        for u in range(4):
            waitfn(u)
            seq = list(range(8))
            def issue(t, slot):
                if t == 0: a(f"v_mov_b32 v{adr[slot]}, v{vTR}")
                else: a(f"v_xor_b32 v{adr[slot]}, {32*t}, v{vTR}")
                a(f"ds_read_b64_tr_b16 {vr(stg[slot],2)}, v{adr[slot]} offset:{4096*(2*u)}")
                a(f"ds_read_b64_tr_b16 {vr(stg[slot]+2,2)}, v{adr[slot]} offset:{4096*(2*u+1)}")
            for t in range(3): issue(t, t)
            for t in range(8):
                if t + 3 < 8: issue(t + 3, (t + 3) % 4)
                rem = min(8, t + 4) - (t + 1)
                a(f"s_waitcnt lgkmcnt({2*rem})")
                a(f"v_mfma_f32_16x16x32_bf16 {vr(Dt(t))}, {vr(S+8*u)}, {vr(stg[t % 4])}, {'0' if u == 0 else vr(Dt(t))}")
    def write_partial(s):
        a = s.a
        a(f"v_and_b32 v{vA}, 15, v{vL}\nv_lshlrev_b32 v{vA}, 2, v{vA}\ns_lshl_b32 s{sT0}, s{sW}, 9\ns_add_u32 s{sT0}, s{sT0}, {PB}\nv_add_u32 v{vA}, s{sT0}, v{vA}")
        a(f"s_lshl_b32 s{sT0}, s{sW}, 3\ns_add_u32 s{sT0}, s{sT0}, {ML}\nv_mov_b32 v{vB_}, s{sT0}")
        s.execm(0xFFFF)
        for t in range(8): a(f"ds_write_b32 v{vA}, v{Dt(t)} offset:{64*t}")
        s.execm(1)
        a(f"ds_write_b64 v{vB_}, v[{vD}:{vE}]")
        s.execm(-1)
    def combine_publish(s, L):
        a = s.a
        a(f"""v_and_b32 v{vA}, 31, v{vL}
        v_lshlrev_b32 v{vA}, 4, v{vA}
        v_add_u32 v{vB_}, {PB}, v{vA}
        v_mov_b32 v{vC}, {ML}""")
        for w in range(4): a(f"ds_read_b128 {vr(S+4*w)}, v{vB_} offset:{512*w}")
        a(f"ds_read_b128 {vr(S+16)}, v{vC}\nds_read_b128 {vr(S+20)}, v{vC} offset:16")
        a(f"""s_lshl_b32 s{sT0}, s{sX}, 15
        s_lshl_b32 s{sT1}, s{sJ}, 10
        s_add_u32 s{sT0}, s{sT0}, s{sT1}
        s_add_u32 s{sT0}, s{sT0}, {offA(L)}
        v_add_u32 v{vA}, s{sT0}, v{vA}
        v_mov_b32 v{vB_}, s{sT0}
        s_waitcnt lgkmcnt(0)""")
        mm = [S+16, S+18, S+20, S+22]; ll = [S+17, S+19, S+21, S+23]
        M = S + 24
        a(f"v_max3_f32 v{M}, v{mm[0]}, v{mm[1]}, v{mm[2]}\nv_max_f32 v{M}, v{M}, v{mm[3]}")
        for w in range(4): a(f"v_sub_f32 v{mm[w]}, v{mm[w]}, v{M}")
        for w in range(4): a(f"v_exp_f32 v{mm[w]}, v{mm[w]}")
        a(f"v_mul_f32 v{M+1}, v{mm[0]}, v{ll[0]}")
        for w in range(1, 4): a(f"v_fmac_f32 v{M+1}, v{mm[w]}, v{ll[w]}")
        for k in range(4): a(f"v_mul_f32 v{S+k}, v{mm[0]}, v{S+k}")
        for w in range(1, 4):
            for k in range(4): a(f"v_fmac_f32 v{S+k}, v{mm[w]}, v{S+4*w+k}")
        for k in range(4): a(f"v_bfi_b32 v{S+k}, s{sM8}, v{S+k}, v{vT}")
        a(f"v_mov_b32 v{M+2}, v{vT}\nv_mov_b32 v{M+3}, v{vT}")
        def st(f):
            s.execm(0xFFFFFFFF)
            a(f"global_store_dwordx4 v{vA}, {vr(S)}, {sp(sWS)}{f}")
            s.execm(1)
            a(f"global_store_dwordx4 v{vB_}, {vr(M)}, {sp(sWS)} offset:512{f}")
            s.execm(-1)
        s.pub(st)
    def a_addr(s, L):
        a = s.a
        a(f"""v_lshrrev_b32 v{vA}, 5, v{vL}
        v_lshlrev_b32 v{vA}, 12, v{vA}          ; b*4096
        s_lshl_b32 s{sT0}, s{sX}, 15
        s_lshl_b32 s{sT1}, s{sW}, 13
        s_add_u32 s{sT0}, s{sT0}, s{sT1}
        s_add_u32 s{sT0}, s{sT0}, {offA(L)}
        v_add_u32 v{vA}, s{sT0}, v{vA}
        v_and_b32 v{vB_}, 3, v{vL}
        v_lshl_add_u32 v{vB_}, v{vB_}, 10, v{vA}
        v_and_b32 v{vC}, 31, v{vL}
        v_lshl_add_u32 v{vA}, v{vC}, 4, v{vA}""")
    def a_load(s):
        for c in range(4): s.a(f"global_load_dwordx4 {vr(S+4*c)}, v{vA}, {sp(sWS)} offset:{1024*c} sc1")
        s.a(f"global_load_dwordx4 {vr(S+16)}, v{vB_}, {sp(sWS)} offset:512 sc1")
    def a_check(s):
        a = s.a
        s.check_tags([S + i for i in range(16)], 0xff)
        a(f"v_bitop3_b32 v{vG}, v{S+18}, v{vG}, v{vT} bitop3:0xDE\nv_bitop3_b32 v{vG}, v{S+19}, v{vG}, v{vT} bitop3:0xDE\nv_cmp_eq_u32 vcc, 0, v{vG}")
    def a_finish(s):
        a = s.a
        m, l = S + 16, S + 17
        dp = "row_mask:0xf bank_mask:0xf"
        a(f"""v_max_f32_dpp v{vA}, v{m}, v{m} quad_perm:[1,0,3,2] {dp}
        v_max_f32_dpp v{vA}, v{vA}, v{vA} quad_perm:[2,3,0,1] {dp}
        v_sub_f32 v{m}, v{m}, v{vA}
        v_exp_f32 v{m}, v{m}
        v_mul_f32 v{l}, v{m}, v{l}
        v_add_f32_dpp v{vA}, v{l}, v{l} quad_perm:[1,0,3,2] {dp}
        v_add_f32_dpp v{vA}, v{vA}, v{vA} quad_perm:[2,3,0,1] {dp}
        v_rcp_f32 v{vA}, v{vA}
        v_mul_f32 v{m}, v{m}, v{vA}""")
        for k in range(4): a(f"v_mul_f32_dpp v{S+20+k}, v{m}, v{S+k} quad_perm:[0,0,0,0] {dp}")
        for c in range(1, 4):
            for k in range(4): a(f"v_fmac_f32_dpp v{S+20+k}, v{m}, v{S+4*c+k} quad_perm:[{c},{c},{c},{c}] {dp}")
        a(f"""v_cvt_pk_bf16_f32 v{S+20}, v{S+20}, v{S+21}
        v_cvt_pk_bf16_f32 v{S+21}, v{S+22}, v{S+23}
        v_lshlrev_b32 v{vA}, 3, v{vL}
        s_lshl_b32 s{sT0}, s{sW}, 10
        s_add_u32 s{sT0}, s{sT0}, {SH}
        v_add_u32 v{vA}, s{sT0}, v{vA}
        ds_write_b64 v{vA}, {vr(S+20,2)}
        s_waitcnt lgkmcnt(0)""")
    def b1_publish(s, L):
        a = s.a
        a(f"""v_and_b32 v{vA}, 31, v{vL}
        v_lshlrev_b32 v{vB_}, 4, v{vA}
        v_add_u32 v{vB_}, {YP}, v{vB_}
        ds_read_b128 {vr(S)}, v{vB_}
        v_lshlrev_b32 v{vA}, 2, v{vA}
        s_lshl_b32 s{sT0}, s{sJ}, 10
        s_lshl_b32 s{sT1}, s{sX}, 7
        s_add_u32 s{sT1}, s{sT1}, s{sT0}
        s_add_u32 s{sT1}, s{sT1}, {offB1(L)}
        v_add_u32 v{vA}, s{sT1}, v{vA}
        s_waitcnt lgkmcnt(0)
        v_add_f32 v{S}, v{S}, v{S+1}
        v_add_f32 v{S+2}, v{S+2}, v{S+3}
        v_add_f32 v{S}, v{S}, v{S+2}
        v_bfi_b32 v{S}, s{sM8}, v{S}, v{vT}""")
        s.execm(0xFFFFFFFF)
        a(f"global_store_dword v{vA}, v{S}, {sp(sWS)} sc1")
        s.execm(-1)
        a(f"s_add_u32 s{sT0}, s{sT0}, {offB1(L)}\nv_lshlrev_b32 v{vA}, 4, v{vL}\nv_add_u32 v{vA}, s{sT0}, v{vA}")
    def b1_load(s): s.a(f"global_load_dwordx4 {vr(S)}, v{vA}, {sp(sWS)} sc1")
    def b1_check(s):
        s.check_tags([S, S+1, S+2, S+3], 0xff); s.a(f"v_cmp_eq_u32 vcc, 0, v{vG}")
    def b1_reduce(s):
        a = s.a; dp = "row_mask:0xf bank_mask:0xf"
        for k in range(4): a(f"v_add_f32_dpp v{S+k}, v{S+k}, v{S+k} row_ror:8 {dp}")
        a(f"""v_permlane16_swap_b32 v{S}, v{S+1}
        v_permlane16_swap_b32 v{S+2}, v{S+3}
        v_add_f32 v{S}, v{S}, v{S+1}
        v_add_f32 v{S+2}, v{S+2}, v{S+3}
        v_permlane32_swap_b32 v{S}, v{S+2}
        v_add_f32 v{S}, v{S}, v{S+2}
        v_cvt_pk_bf16_f32 v{S}, v{S}, v{S}
        v_and_b32 v{S}, 0xffff0000, v{S}
        v_add_f32 v{S}, v{vXO}, v{S}
        v_cvt_pk_bf16_f32 v{S}, v{S}, v{S}
        v_and_b32 v{vXO}, 0xffff0000, v{S}""")
    def vidx(s, dst, tmp):
        s.a(f"v_and_b32 v{dst}, 7, v{vL}\nv_lshrrev_b32 v{tmp}, 4, v{vL}\nv_lshl_add_u32 v{dst}, v{dst}, 2, v{tmp}")
    def b2_publish(s, L):
        a = s.a
        s.vidx(vA, vB_)
        a(f"""v_lshlrev_b32 v{vA}, 2, v{vA}
        s_lshl_b32 s{sT0}, s{sX}, 12
        s_lshl_b32 s{sT1}, s{sJ}, 7
        s_add_u32 s{sT0}, s{sT0}, s{sT1}
        s_add_u32 s{sT0}, s{sT0}, {offB2(L)}
        v_add_u32 v{vA}, s{sT0}, v{vA}
        v_bfi_b32 v{S}, s{sM16}, v{vXO}, v{vT}""")
        s.execm(0x00FF00FF00FF00FF)
        s.pub(lambda f: a(f"global_store_dword v{vA}, v{S}, {sp(sWS)}{f}"))
        s.execm(-1)
    def b2_addr(s, L):
        a = s.a
        a(f"""s_lshl_b32 s{sT0}, s{sX}, 12
        s_lshl_b32 s{sT1}, s{sW}, 10
        s_add_u32 s{sT0}, s{sT0}, s{sT1}
        s_add_u32 s{sT0}, s{sT0}, {offB2(L)}
        v_lshlrev_b32 v{vA}, 4, v{vL}
        v_add_u32 v{vA}, s{sT0}, v{vA}""")
    def b2_load(s): s.a(f"global_load_dwordx4 {vr(S)}, v{vA}, {sp(sWS)} sc1")
    def b2_check(s):
        s.check_tags([S, S+1, S+2, S+3], 0xffff); s.a(f"v_cmp_eq_u32 vcc, 0, v{vG}")
    def b2_finish(s):
        a = s.a
        a(f"""v_perm_b32 v{S}, v{S+1}, v{S}, s{sPERM}
        v_perm_b32 v{S+1}, v{S+3}, v{S+2}, s{sPERM}
        v_bfe_u32 v{vA}, v{vL}, 2, 1
        v_lshlrev_b32 v{vA}, 8, v{vA}
        v_lshrrev_b32 v{vB_}, 3, v{vL}
        v_lshl_add_u32 v{vA}, v{vB_}, 5, v{vA}
        v_and_b32 v{vB_}, 3, v{vL}
        v_lshl_add_u32 v{vA}, v{vB_}, 3, v{vA}
        s_lshl_b32 s{sT0}, s{sW}, 10
        s_add_u32 s{sT0}, s{sT0}, {SH}
        v_add_u32 v{vA}, s{sT0}, v{vA}
        ds_write_b64 v{vA}, {vr(S,2)}
        s_waitcnt lgkmcnt(0)""")

    def chain(s, L, Wo, Wq, under_stream, kb_bursts=None):
        a = s.a
        s.write_partial()
        s.barrier()
        s.stamp(f"L{L} bar1")
        l = s.wave0(); s.combine_publish(L); s.endw0(l)
        if L == 2:
            adr = [S + 24 + i for i in range(8)]
            s.v_move_addr(adr)
            for T in range(8): s.v_move_tile(T, adr)
        if kb_bursts: kb_bursts(0)
        s.a_addr(L)
        s.poll(s.a_load, s.a_check, piggy=under_stream)
        s.stamp(f"L{L} A done")
        s.a_finish()
        if Wo is None:
            s.vmall() if False else None
            s.w_tr(S + 16); Wreg = S + 16
        else: Wreg = Wo
        s.proj(Wreg, stats=False)
        s.barrier()
        if kb_bursts: kb_bursts(1)
        l = s.wave0()
        s.b1_publish(L)
        skip = None
        if L == 3:
            skip = a.label("Lfin"); a(f"s_cmp_lg_u32 s{sX}, 0\ns_cbranch_scc1 {skip}")
        s.poll(s.b1_load, s.b1_check, piggy=under_stream, delay=s.b1delay if not under_stream else 0, common=False)
        s.stamp(f"L{L} B1 done")
        s.b1_reduce()
        if L < 3:
            s.b2_publish(L)
        else:
            s.vidx(vA, vB_)
            a(f"""v_lshrrev_b32 v{vB_}, 4, v{vA}       ; b'
            v_and_b32 v{vA}, 15, v{vA}
            v_lshlrev_b32 v{vB_}, 9, v{vB_}
            v_add_u32 v{vA}, v{vA}, v{vB_}
            s_lshl_b32 s{sT0}, s{sJ}, 4
            v_add_u32 v{vA}, s{sT0}, v{vA}
            v_lshlrev_b32 v{vA}, 1, v{vA}""")
            s.execm(0x00FF00FF00FF00FF)
            a(f"global_store_short_d16_hi v{vA}, v{vXO}, {sp(sOUT)}")
            s.execm(1)
            l2 = a.label("Lep")
            a(f"s_cmp_lg_u32 s{sJ}, 0\ns_cbranch_scc1 {l2}\nv_mov_b32 v{vA}, 0\nglobal_store_dword v{vA}, v{vT}, {sp(sWS)}\n{l2}:")
            s.execm(-1)
            a(f"{skip}:")
        s.endw0(l)
        if L == 3: return
        if kb_bursts: kb_bursts(2)
        s.b2_addr(L)
        s.poll(s.b2_load, s.b2_check, piggy=under_stream)
        s.stamp(f"L{L} B2 done")
        s.b2_finish()
        s.proj(Wq, stats=True)
        s.barrier()
        l = s.wave0(); s.q_finalize(L + 1); s.endw0(l)
        if kb_bursts: kb_bursts(3)
        s.c_addr(L + 1)
        s.poll(s.c_load, s.c_check, piggy=under_stream)
        s.stamp(f"L{L} C done")
        s.c_finish()

    def gen(s):
        a = s.a
        a(f"s_cmp_ge_u32 s2, 256\ns_cbranch_scc1 L_end")
        a(f"""s_load_dwordx4 s[16:19], s[0:1], 8
        s_load_dwordx4 s[20:23], s[0:1], 48
        s_load_dwordx4 s[24:27], s[0:1], 24
        s_load_dwordx4 s[28:31], s[0:1], 64
        s_load_dwordx2 s[32:33], s[0:1], 0
        s_load_dwordx2 s[14:15], s[0:1], 80
        s_load_dwordx2 s[10:11], s[0:1], 96""")
        s.stamp("start")
        a(f"""v_lshrrev_b32 v1, 6, v0
        v_and_b32 v0, 63, v0
        v_readfirstlane_b32 s{sW}, v1
        s_and_b32 s{sX}, s2, 7
        s_lshr_b32 s{sJ}, s2, 3
        s_lshr_b32 s{sHL}, s{sJ}, 3
        s_bfe_u32 s{sB}, s{sJ}, 0x10002
        s_and_b32 s{sC_}, s{sJ}, 3
        s_mov_b32 s{sSC}, 0x{struct_f32(128 ** -0.5 * math.log2(math.e)):08x}
        s_mov_b32 s{sM8}, 0xffffff00
        s_mov_b32 s{sM16}, 0xffff0000
        s_mov_b32 s{sPERM}, 0x07060302
        s_mov_b32 s{sVBT}, 0
        s_mov_b32 s{sFLAG}, 0""")
        a(f"""v_and_b32 v{vA}, 15, v{vL}              ; lam
        v_lshrrev_b32 v{vB_}, 4, v{vL}             ; g
        v_lshlrev_b32 v{vK}, 8, v{vA}
        v_lshl_add_u32 v{vK}, v{vB_}, 4, v{vK}     ; lam*256 + g*16
        v_lshlrev_b32 v{vC}, 1, v{vB_}
        v_xor_b32 v{vC}, v{vC}, v{vA}              ; lam ^ 2g
        v_lshlrev_b32 v{vC}, 4, v{vC}
        v_lshl_add_u32 v{vVE}, v{vB_}, 8, v{vC}    ; g*256 + ..
        v_xor_b32 v{vVO}, 128, v{vVE}
        v_lshrrev_b32 v{vC}, 2, v{vA}              ; lam>>2
        v_lshl_add_u32 v{vC}, v{vB_}, 2, v{vC}
        v_and_b32 v{vD}, 7, v{vC}
        v_lshlrev_b32 v{vD}, 5, v{vD}              ; 32*rho7
        v_lshl_add_u32 v{vD}, v{vC}, 8, v{vD}      ; rho*256 + ..
        v_and_b32 v{vE}, 3, v{vA}
        v_lshl_add_u32 v{vD}, v{vE}, 3, v{vD}      ; + 8*(lam&3)
        s_lshl_b32 s{sT0}, s{sW}, 15
        v_add_u32 v{vTR}, s{sT0}, v{vD}
        s_add_u32 s{sVBM}, s{sT0}, {VREG}
        s_lshl_b32 s{sT0}, s{sW}, 10
        s_add_u32 s{sT0}, s{sT0}, {SH}
        v_lshlrev_b32 v{vD}, 4, v{vB_}             ; g*16
        v_add_u32 v{vSHQ}, s{sT0}, v{vD}
        v_lshl_add_u32 v{vSHR}, v{vE}, 8, v{vSHQ}""")
        a(f"""s_lshl_b32 s{sT0}, s{sB}, 5
        s_lshl_b32 s{sT1}, s{sX}, 2
        s_add_u32 s{sT0}, s{sT0}, s{sT1}
        s_add_u32 s{sT0}, s{sT0}, s{sHL}
        s_lshl_b32 s{sT0}, s{sT0}, 13
        s_lshl_b32 s{sT1}, s{sC_}, 9
        s_add_u32 s{sT0}, s{sT0}, s{sT1}
        s_lshl_b32 s{sT1}, s{sW}, 7
        s_add_u32 s{sT0}, s{sT0}, s{sT1}
        s_add_u32 s{sT0}, s{sT0}, 6144
        s_lshl_b32 s{sT0}, s{sT0}, 8
        s_add_u32 s{sT1}, s{sT0}, 4096
        s_lshl_b32 s{sT2}, s{sW}, 20
        s_lshl_b32 s{sT3}, s{sX}, 10
        s_add_u32 s{sT2}, s{sT2}, s{sT3}
        s_lshl_b32 s{sT3}, s{sJ}, 5
        s_add_u32 s{sT2}, s{sT2}, s{sT3}
        s_waitcnt lgkmcnt(0)
        s_load_dword s{sT}, {sp(sWS)}, 0""")
        for p in (sKA, sKB): a(f"s_add_u32 s{p}, s{p}, s{sT1}\ns_addc_u32 s{p+1}, s{p+1}, 0")
        for p in (sVA, sVB): a(f"s_add_u32 s{p}, s{p}, s{sT0}\ns_addc_u32 s{p+1}, s{p+1}, 0")
        for p in (sWQA, sWQB): a(f"s_add_u32 s{p}, s{p}, s{sT2}\ns_addc_u32 s{p+1}, s{p+1}, 0")
        a(f"""s_lshl_b32 s{sT2}, s{sX}, 19
        s_lshl_b32 s{sT3}, s{sW}, 17
        s_add_u32 s{sT2}, s{sT2}, s{sT3}
        s_lshl_b32 s{sT3}, s{sJ}, 5
        s_add_u32 s{sT2}, s{sT2}, s{sT3}""")
        for p in (sWOA, sWOB): a(f"s_add_u32 s{p}, s{p}, s{sT2}\ns_addc_u32 s{p+1}, s{p+1}, 0")
        wqa = s.w_dma(sWQA, 8192)
        a(f"""v_bfe_u32 v{vA}, v{vL}, 4, 1
        v_lshlrev_b32 v{vA}, 10, v{vA}
        v_and_b32 v{vB_}, 15, v{vL}
        v_lshl_add_u32 v{vA}, v{vB_}, 4, v{vA}
        s_lshl_b32 s{sT0}, s{sW}, 8
        v_add_u32 v{vA}, s{sT0}, v{vA}""")
        xl = s.vm(f"global_load_dwordx4 {vr(S)}, v{vA}, {sp(sXP)}")
        s.vidx(vA, vB_)
        a(f"""v_lshrrev_b32 v{vB_}, 4, v{vA}
        v_and_b32 v{vA}, 15, v{vA}
        v_lshlrev_b32 v{vB_}, 9, v{vB_}
        v_add_u32 v{vA}, v{vA}, v{vB_}
        s_lshl_b32 s{sT0}, s{sJ}, 4
        v_add_u32 v{vA}, s{sT0}, v{vA}
        v_lshlrev_b32 v{vA}, 1, v{vA}""")
        xo = s.vm(f"global_load_ushort v{vXO}, v{vA}, {sp(sXP)}")
        kA = lambda r: ar(r)
        kB = lambda r: vr(KB + r)
        ka_ids = []
        for T in range(2): ka_ids.append(s.k_tile(T, sKA, kA))
        a(f"s_waitcnt lgkmcnt(0)\ns_add_u32 s{sT}, s{sT}, 1\nv_mov_b32 v{vT}, s{sT}")
        l = s.wave0()
        a(f"""s_getreg_b32 s{sT0}, hwreg(HW_REG_XCC_ID)
        s_and_b32 s{sT0}, s{sT0}, 15
        v_mov_b32 v{S+4}, s{sT}
        v_mov_b32 v{S+5}, s{sT0}
        v_mov_b32 v{S+6}, s{sT}
        v_mov_b32 v{S+7}, s{sT}
        s_lshl_b32 s{sT0}, s{sX}, 9
        s_lshl_b32 s{sT1}, s{sJ}, 4
        s_add_u32 s{sT0}, s{sT0}, s{sT1}
        s_add_u32 s{sT0}, s{sT0}, {WS_XID}
        v_mov_b32 v{vA}, s{sT0}""")
        s.execm(1)
        a(f"global_store_dwordx4 v{vA}, {vr(S+4)}, {sp(sWS)} sc1")
        s.execm(-1)
        s.endw0(l)
        a(f"""v_and_b32 v{vA}, 31, v{vL}
        v_lshlrev_b32 v{vA}, 4, v{vA}
        s_lshl_b32 s{sT0}, s{sW}, 10
        s_add_u32 s{sT0}, s{sT0}, {SH}
        v_add_u32 v{vA}, s{sT0}, v{vA}""")
        for k in range(4): a(f"v_mov_b32 v{S+8+k}, 0x3f803f80")
        a(f"ds_write_b128 v{vA}, {vr(S+8)} offset:512")
        s.vmwait(xo)
        a(f"ds_write_b128 v{vA}, {vr(S)}\nv_lshlrev_b32 v{vXO}, 16, v{vXO}")
        s.w_tr(R1)
        s.lgk0()
        woa = s.w_dma(sWOA, 1024)
        s.proj(R1, stats=True)
        s.barrier()
        l = s.wave0(); s.q_finalize(0, force_sc1=True); s.endw0(l)
        s.stamp("C0 pub")
        for T in range(2, 5): ka_ids.append(s.k_tile(T, sKA, kA))
        s.vmwait(woa)
        s.w_tr(R2); s.lgk0()
        wqb = s.w_dma(sWQB, 8192)
        for T in range(5, 8): ka_ids.append(s.k_tile(T, sKA, kA))
        va = []
        va.append(s.v_tile(0, sVA))
        s.vmwait(wqb)
        s.w_tr(R3); s.lgk0()
        va.append(s.v_tile(1, sVA))
        l = s.wave0()
        a(f"""v_and_b32 v{vA}, 31, v{vL}
        v_lshlrev_b32 v{vA}, 4, v{vA}
        s_lshl_b32 s{sT0}, s{sX}, 9
        s_add_u32 s{sT0}, s{sT0}, {WS_XID}
        v_add_u32 v{vA}, s{sT0}, v{vA}""")
        def xid_check():
            a(f"""v_xor_b32 v{vG}, v{S}, v{vT}
            v_bitop3_b32 v{vG}, v{S+2}, v{vG}, v{vT} bitop3:0xDE
            v_bitop3_b32 v{vG}, v{S+3}, v{vG}, v{vT} bitop3:0xDE
            v_cmp_eq_u32 vcc, 0, v{vG}""")
        s.poll(lambda: a(f"global_load_dwordx4 {vr(S)}, v{vA}, {sp(sWS)} sc1"), xid_check, common=False)
        a(f"""s_getreg_b32 s{sT0}, hwreg(HW_REG_XCC_ID)
        s_and_b32 s{sT0}, s{sT0}, 15
        v_cmp_eq_u32 vcc, s{sT0}, v{S+1}
        s_cmp_eq_u64 vcc, exec
        s_cselect_b32 s{sFLAG}, {0 if s.force_global else 1}, 0""")
        s.endw0(l)
        va.append(s.v_tile(2, sVA))
        s.c_addr(0)
        s.poll(s.c_load, s.c_check)
        s.stamp("C0 done")
        va.append(s.v_tile(3, sVA))
        va.append(s.v_tile(4, sVA))
        s.c_finish()
        va.append(s.v_tile(5, sVA))
        s.qk(kA)
        s.softmax()
        s.stamp("L0 softmax")
        adr = [S+4, S+5, S+6, S+7, S+12, S+13, S+14, S+15]
        s.v_move_addr(adr)
        va.append(s.v_tile(6, sVA))
        va.append(s.v_tile(7, sVA))
        kb_ids = []
        for T in range(8):
            if T >= 4: kb_ids.append(s.k_tile(T - 4, sKB, kB))
            s.vmwait(va[T])
            s.v_move_tile(T, adr)
        s.lgk0()
        s.stamp("L0 VA landed")
        s.pv_regs()
        def bursts(i):
            D = s.D; s.D = 63
            if i == 1:
                for T in (4, 5): s.k_tile(T, sKB, kB)
            if i == 3:
                for T in (6, 7): s.k_tile(T, sKB, kB)
            s.D = D
        s.chain(0, R2, R3, under_stream=True, kb_bursts=bursts)
        lf = a.label("Lforce"); lfe = a.label("Lforce_e")
        a(f"{lf}:\ns_cmp_ge_u32 s{sVBT}, {s.NDYN}\ns_cbranch_scc1 {lfe}")
        s.piggy()
        a(f"s_branch {lf}\n{lfe}:")
        D = s.D; s.D = 63
        vb = {}
        for T in range(s.NDYN, 8): vb[T] = s.v_tile(T, sVB)
        first_static = s.vm_n
        wob = s.w_dma(sWOB, 1024)
        s.D = D
        s.qk(kB)
        s.softmax()
        s.stamp("L1 softmax")
        nstat = (8 - s.NDYN) * 4 + 4
        def waitv(u):
            T = 2 * u + 1
            if T < s.NDYN: a(f"s_waitcnt vmcnt({nstat})")
            else: s.vmwait(vb[T])
        s.pv_lds(waitv)
        s.stamp("L1 PV done")
        s.vmwait(wob)
        s.chain(1, None, R1, under_stream=False)
        s.qk(kA); s.softmax(); s.pv_regs()
        s.stamp("L2 PV done")
        s.chain(2, R2, R3, under_stream=False)
        s.qk(kB); s.softmax(); s.lgk0(); s.pv_regs()
        s.stamp("L3 PV done")
        s.chain(3, None, None, under_stream=False)
        s.stamp("end")
        if s.stamps:
            a("s_waitcnt lgkmcnt(0)")
            a(f"s_lshl_b32 s{sT0}, s2, 2\ns_add_u32 s{sT0}, s{sT0}, s{sW}\ns_lshl_b32 s{sT0}, s{sT0}, 8\ns_add_u32 s{sT0}, s{sT0}, {WS_STAMP}\nv_mov_b32 v{vA}, s{sT0}")
            s.execm(1)
            for i in range(s.nstamp):
                r = sSTAMP + 2 * i
                a(f"v_mov_b32 v{S}, s{r}\nv_mov_b32 v{S+1}, s{r+1}\nglobal_store_dwordx2 v{vA}, {vr(S,2)}, {sp(sWS)} offset:{8*i}\ns_nop 1")
            s.execm(-1)
        a("s_waitcnt vmcnt(0)\nL_end:")
        lines = hazard.fix(a.text().split("\n"))
        return wrap("\n".join(lines) + "\n", sgpr=100)

import struct
def struct_f32(x): return struct.unpack("<I", struct.pack("<f", x))[0]

if __name__ == "__main__":
    import argparse
    p = argparse.ArgumentParser()
    p.add_argument("-o", default="k1.s"); p.add_argument("--stamps", action="store_true")
    p.add_argument("-D", type=int, default=12); p.add_argument("--ndyn", type=int, default=6)
    p.add_argument("--global", dest="fg", action="store_true"); p.add_argument("--b1delay", type=int, default=0)
    o = p.parse_args()
    g = G(D=o.D, NDYN=o.ndyn, stamps=o.stamps, force_global=o.fg, b1delay=o.b1delay)
    t = g.gen()
    open(o.o, "w").write(t)
    open(o.o + ".stamps", "w").write("\n".join(g.stampnames))
    print("lines", t.count("\n"), "stamps", g.stampnames)
```
